```python
import torch

def _softmax(x, axis=-1):
    return torch.softmax(x, dim=axis)
def _gelu(x):
    return torch.nn.functional.gelu(x, approximate="tanh")
def _silu(x):
    return torch.nn.functional.silu(x)
def _sigmoid(x):
    return torch.sigmoid(x)
def _layernorm(x, axis=-1, eps=1e-5):
    m = x.mean(dim=axis, keepdim=True)
    v = x.var(dim=axis, keepdim=True, unbiased=False)
    return (x - m) / torch.sqrt(v + eps)
def _scatter_add(tgt, idx, src, axis=0):
    return tgt.clone().index_add_(axis, idx, src)
def _segment_sum(src, seg, n):
    out = torch.zeros((n,) + src.shape[1:], dtype=src.dtype)
    return out.index_add_(0, seg, src)
def _pad(x, pw):
    flat = tuple(v for pair in reversed(pw) for v in pair)
    return torch.nn.functional.pad(x, flat)

kernel_name = 'standalone__normalfloat_lut_codebook_lookup__prompt'

def setup_inputs():

    _w = (lambda a: (lambda t: t.to(torch.bfloat16) if t.is_floating_point() else t)(torch.as_tensor(a)))
    B, S, D, F = 1, 2048, 1024, 3584
    G = 64 if 64 > 0 else D
    D = (D // G) * G
    ng = D // G
    nf4 = torch.tensor([
        -1.0, -0.6961928009986877, -0.5250730514526367, -0.39491748809814453,
        -0.28444138169288635, -0.18477343022823334, -0.09105003625154495, 0.0,
        0.07958029955625534, 0.16093020141124725, 0.24611230194568634, 0.33791524171829224,
        0.44070982933044434, 0.5626170039176941, 0.7229568362236023, 1.0
    ], dtype=float)
    qw = torch.randint(0, 16, (D, F)).to(torch.int64)
    absmax = (torch.abs((lambda *s: torch.randn(*s, dtype=torch.bfloat16) * 0.05)(ng, F)) + 0.01).to(float)
    return {
        "x": _w((lambda *s: torch.randn(*s, dtype=torch.bfloat16) * 0.05)(B, S, D)),
        "qw": _w(qw),
        "codebook": _w(nf4),
        "absmax": _w(absmax),
    }

def reference(x, qw, codebook, absmax):
    B, S, D = x.shape
    ng, F = absmax.shape
    G = D // ng
    w_nf = codebook[qw]
    s = (lambda x, n, axis: torch.repeat_interleave(x, n, dim=axis))(absmax, G, axis=0)
    w = (lambda x, dt: x.to(dt))(w_nf * s, x.dtype)
    return torch.einsum("bsd,df->bsf", x, w)
```

```python
import sys

NAME = "standalone__normalfloat_lut_codebook_lookup__prompt"

XROW, QROW, OROW, AMROW = 2048, 14336, 7168, 7168
X_BYTES, Q_BYTES, O_BYTES, AM_BYTES = 4194304, 14680064, 14680064, 114688
PANEL = 458752
GBASE = (0, 262144, 393216)
GNU = (4, 2, 1)
GNS = (8, 4, 2)
GJ0 = (0, 8, 12)
FLAG_OFF = 8 << 20
STAMP_OFF = 16 << 20
WS_BYTES = 32 << 20
SPIN_MAX = 0x100000

sSPIN = 3
sWK = 4
sAMO = 7
sPC = 8
sX, sQ, sAM, sCB, sO, sWS, sDBG = 20, 24, 28, 32, 36, 40, 44
sW, sMT, sP, sC0 = 48, 49, 50, 51
sT0, sT1 = 52, 53
sNONCE = 54
sRDY = 56
sT2 = 58
sC12 = 60
sH = 76
sXST, sROW, sSO = 77, 78, 79
sSTAMP = 80

vTID = 0
vT0, vT1, vT2, vT3 = 1, 2, 3, 4
vRD0, vRD1 = 5, 6
vFST = 7
vXR = 8
vOUT = 10
vXG = 12
vWG = 16
vQA, vQB1, vQB2 = 19, 20, 21
vFLG = 23
vSC = 24
vF = 32
vQAd = 64
vQBd = 96
vACC = 144
vEP = 32
vPOLL = 62
vNV = vACC + 104


class Em:
    def __init__(self):
        self.L = []
        self.vm = self.vm_done = self.lg = self.lg_done = 0
        self.n = 0
        self.lut_free = False
        self.accw = {}

    def raw(self, s):
        self.L.append(s)

    def __call__(self, s):
        for l in s.split("\n"):
            l = l.strip()
            if not l:
                continue
            self.L.append("    " + l)
            if not (l.endswith(":") or l.startswith(".") or l.startswith(";")):
                self.n += 1

    def label(self, s):
        self.L.append(s + ":")

    def vmem(self, s):
        self(s)
        self.vm += 1
        return self.vm

    def lds(self, s):
        self(s)
        self.lg += 1
        return self.lg

    def wait(self, vm=None, lg=None):
        parts = []
        if vm is not None and vm > self.vm_done:
            n = min(self.vm - vm, 63)
            parts.append(f"vmcnt({n})")
            self.vm_done = self.vm - n
        if lg is not None and lg > self.lg_done:
            n = min(self.lg - lg, 15)
            parts.append(f"lgkmcnt({n})")
            self.lg_done = self.lg - n
        if parts:
            self("s_waitcnt " + " ".join(parts))
            return 1
        return 0

    def nops(self, k):
        while k > 0:
            m = min(k, 16)
            self(f"s_nop {m-1}")
            self.n += m - 1
            k -= m

    def acc_ready(self, tiles):
        need = max(self.accw[b] for b in tiles) + 9 - self.n
        if need > 0:
            self.nops(need)


class Cfg:
    NU = 24
    NX = 4
    NB = 8
    D = 6
    stage = 24
    first_stages = (16,)
    stamps = False
    padto = 0
    dbg_wave = 150
    out_flags = "nt"
    q_flags = ""
    mapping = 0
    items = None
    inter = 0
    inter_from = 6
    epi_gap = 3
    dma_gap = 0
    budget = 2
    vcost = 2
    land = 40
    epi_slack = 0
    x_lead = 16
    x_fly = 100
    waitevery = 2
    mid = "x q x"
    hold = True
    st_flags = "sc1"
    w_flags = "sc1"
    x_early = 2
    init = "W W x O B r1 W x"
    order_barrier = False
    order = "lock"
    zmul = 4
    xtouch = False
    pollb_at = 40
    pollb_wait = 12
    pref_code = True
    tour = True
    touch = True
    stamp_m = {120: 8}


def stamp(e, cfg, i, instream=False):
    if cfg.stamps and (instream or i not in cfg.stamp_m.values()):
        assert i < 11
        e(f"{'s_memrealtime' if cfg.stamps == 'rt' else 's_memtime'} s[{sSTAMP+2*i}:{sSTAMP+2*i+1}]   ; s_memtime")


def prologue(e, cfg, kname):
    e(f"s_cmp_ge_u32 s2, 256\ns_cbranch_scc1 L_end")
    for r, off in ((sQ, 8), (sCB, 16), (sAM, 24), (sDBG, 40), (sX, 0), (sWS, 48), (sO, 32)):
        e(f"s_load_dwordx2 s[{r}:{r+1}], s[0:1], {off}")
    e(f"s_memrealtime s[{sNONCE}:{sNONCE+1}]")
    stamp(e, cfg, 0)
    if cfg.stamps or cfg.padto:
        e("s_memrealtime s[18:19]")
    e(f"v_lshrrev_b32 v{vT0}, 6, v{vTID}\nv_and_b32 v{vTID}, 63, v{vTID}")
    e(f"s_and_b32 s{sT0}, s2, 7\ns_lshr_b32 s{sT1}, s2, 3")
    e(f"v_readfirstlane_b32 s{sW}, v{vT0}")
    if cfg.mapping == 0:
        e(f"""s_and_b32 s{sMT}, s{sT1}, 7
        s_lshl_b32 s{sMT}, s{sMT}, 1
        s_and_b32 s{sT2}, s{sT0}, 1
        s_add_u32 s{sMT}, s{sMT}, s{sT2}
        s_lshr_b32 s{sP}, s{sT0}, 1
        s_lshl_b32 s{sP}, s{sP}, 2
        s_lshr_b32 s{sT2}, s{sT1}, 3
        s_add_u32 s{sP}, s{sP}, s{sT2}
        s_lshl_b32 s{sC0}, s{sT2}, 2
        s_add_u32 s{sC0}, s{sC0}, s{sMT}
        s_and_b32 s{sC0}, s{sC0}, 15""")
        if cfg.order != "rot":
            e(f"s_mov_b32 s{sC0}, s{sMT}")
    else:
        e(f"""s_and_b32 s{sMT}, s{sT1}, 3
        s_lshl_b32 s{sMT}, s{sMT}, 2
        s_and_b32 s{sT2}, s{sT0}, 3
        s_add_u32 s{sMT}, s{sMT}, s{sT2}
        s_lshr_b32 s{sP}, s{sT0}, 2
        s_lshl_b32 s{sP}, s{sP}, 3
        s_lshr_b32 s{sT2}, s{sT1}, 2
        s_add_u32 s{sP}, s{sP}, s{sT2}
        s_lshl_b32 s{sC0}, s{sT2}, 1
        s_add_u32 s{sC0}, s{sC0}, s{sMT}
        s_and_b32 s{sC0}, s{sC0}, 15""")
    e(f"v_and_b32 v{vT1}, 15, v{vTID}\nv_lshrrev_b32 v{vT2}, 4, v{vTID}")
    for r, n in ((sQ, Q_BYTES), (sCB, 32), (sAM, AM_BYTES), (sDBG, 256), (sX, X_BYTES), (sWS, WS_BYTES), (sO, O_BYTES)):
        e(f"s_mov_b32 s{r+2}, {n}\ns_mov_b32 s{r+3}, 0x20000")


def addr_q(e, cfg):
    e(f"""s_lshr_b32 s{sH}, s{sW}, 1
    s_and_b32 s{sT2}, s{sW}, 1
    s_lshl_b32 s{sT0}, s{sC0}, 1
    s_add_u32 s{sT0}, s{sT0}, s{sH}
    s_mul_i32 s{sT0}, s{sT0}, {32*QROW}
    s_mul_i32 s{sT1}, s{sP}, 896
    s_add_u32 s{sT0}, s{sT0}, s{sT1}
    v_mul_u32_u24 v{vT3}, {8*QROW}, v{vT2}
    v_add_u32 v{vT3}, s{sT0}, v{vT3}
    v_lshl_add_u32 v{vQA}, v{vT1}, 4, v{vT3}
    v_lshl_add_u32 v{vQB2}, v{vT1}, 3, v{vT3}
    s_lshl_b32 s{sT0}, s{sT2}, 8
    v_add_u32 v{vQA}, s{sT0}, v{vQA}
    s_lshl_b32 s{sT0}, s{sT2}, 7
    v_add_u32 v{vQB1}, s{sT0}, v{vQB2}
    s_lshl_b32 s{sT0}, s{sT2}, 2
    v_add_u32 v{vQB2}, s{sT0}, v{vQB2}""")
    e(f"""s_mul_i32 s{sT0}, s{sC0}, {AMROW}
    s_mul_i32 s{sT1}, s{sP}, 448
    s_add_u32 s{sAMO}, s{sT0}, s{sT1}
    s_lshl_b32 s{sT0}, s{sT2}, 7
    v_lshl_add_u32 v{vSC+4}, v{vT1}, 3, s{sT0}
    s_lshl_b32 s{sT0}, s{sT2}, 6
    v_lshl_add_u32 v{vSC+5}, v{vT1}, 2, s{sT0}
    s_lshl_b32 s{sT0}, s{sT2}, 1
    v_lshl_add_u32 v{vSC+6}, v{vT1}, 2, s{sT0}
    v_lshlrev_b32 v{vT3}, 1, v{vTID}""")


def addr_w(e, cfg):
    e(f"""s_lshl_b32 s{sWK}, s{sW}, 12
    s_lshl_b32 s{sWK+1}, s{sW}, 11
    s_lshl_b32 s{sWK+2}, s{sW}, 10
    s_mul_i32 s{sT0}, s{sP}, {PANEL}
    v_lshlrev_b32 v{vRD0}, 4, v{vTID}
    v_add_u32 v{vRD1}, 0x10000, v{vRD0}""")
    for g in range(3):
        e(f"s_add_u32 s{sT1}, s{sT0}, s{sWK+g}")
        if GBASE[g]:
            e(f"s_add_u32 s{sT1}, s{sT1}, {GBASE[g]}")
        e(f"v_add_u32 v{vWG+g}, s{sT1}, v{vRD0}")
    e(f"s_lshl_b32 s{sC12}, s{sC0}, 12")
    if cfg.order in ("rot", "rot0"):
        for t in range(1, 16):
            e(f"s_add_u32 s{sC12+t}, s{sC12+t-1}, 0x1000\ns_and_b32 s{sC12+t}, s{sC12+t}, 0xf000")
    else:
        e(f"s_lshr_b32 s{sT1}, s{sP}, 2\ns_mul_i32 s{sT1}, s{sT1}, {cfg.zmul << 12}")
        e(f"s_sub_u32 s{sT0}, s{sC12}, s{sT1}\ns_and_b32 s{sT0}, s{sT0}, 0xf000")
        for t in range(1, 16):
            e(f"s_cmp_gt_u32 s{sT0}, {(t-1) << 12}\ns_cselect_b32 s{sC12+t}, {(t-1) << 12}, {t << 12}"
              if False else
              f"s_cmp_gt_u32 s{sT0}, {(t-1) << 12}\ns_cselect_b32 s{sC12+t}, {t-1}, {t}\ns_lshl_b32 s{sC12+t}, s{sC12+t}, 12")
            e(f"s_add_u32 s{sC12+t}, s{sC12+t}, s{sT1}\ns_and_b32 s{sC12+t}, s{sC12+t}, 0xf000")


def addr_x(e, cfg):
    ring = cfg.NU * 4096
    e(f"""s_lshl_b32 s{sT0}, s{sMT}, 2
    s_add_u32 s{sT0}, s{sT0}, s{sW}
    s_lshl_b32 s{sT0}, s{sT0}, 16
    v_lshrrev_b32 v{vT3}, 3, v{vTID}
    v_lshlrev_b32 v{vT3}, 11, v{vT3}
    v_add_u32 v{vT3}, s{sT0}, v{vT3}
    v_and_b32 v{vXG}, 7, v{vTID}
    v_xor_b32 v{vXG}, v{vXG}, v{vT2}
    v_xor_b32 v{vXG+1}, 4, v{vXG}
    v_lshl_add_u32 v{vXG}, v{vXG}, 4, v{vT3}
    v_lshl_add_u32 v{vXG+1}, v{vXG+1}, 4, v{vT3}
    v_add_u32 v{vXG+2}, {2*(16384-1024)}, v{vXG}
    v_add_u32 v{vXG+3}, {3*(16384-1024)}, v{vXG+1}
    v_add_u32 v{vXG+1}, {16384-1024}, v{vXG+1}""")
    e(f"s_mul_i32 s{sXST}, s{sW}, {cfg.NX*4096}\ns_add_u32 s{sXST}, s{sXST}, {ring}")
    e(f"""v_lshrrev_b32 v{vT3}, 1, v{vT1}
    v_xor_b32 v{vT3}, v{vT3}, v{vT2}
    v_lshlrev_b32 v{vT3}, 4, v{vT3}
    v_lshl_add_u32 v{vT3}, v{vT1}, 7, v{vT3}
    v_add_u32 v{vXR}, s{sXST}, v{vT3}
    v_xor_b32 v{vXR+1}, 64, v{vXR}""")


def addr_out(e, cfg):
    e(f"""s_lshl_b32 s{sT0}, s{sMT}, 2
    s_add_u32 s{sT0}, s{sT0}, s{sW}
    s_mul_i32 s{sT0}, s{sT0}, {32*OROW}
    s_mul_i32 s{sT1}, s{sP}, 448
    s_add_u32 s{sT0}, s{sT0}, s{sT1}
    v_mul_u32_u24 v{vT3}, {4*OROW}, v{vT2}
    v_add_u32 v{vT3}, s{sT0}, v{vT3}
    v_lshl_add_u32 v{vOUT}, v{vT1}, 3, v{vT3}
    v_lshl_add_u32 v{vOUT+1}, v{vT1}, 2, v{vT3}""")


def addr_flags(e, cfg):
    e(f"""s_lshl_b32 s{sT0}, s{sP}, 10
    s_add_u32 s{sT0}, s{sT0}, {FLAG_OFF}
    v_lshl_add_u32 v{vFLG}, v{vTID}, 3, s{sT0}
    s_lshl_b32 s{sT1}, s{sC0}, 2
    s_lshl_b64 s[{sRDY}:{sRDY+1}], 15, s{sT1}
    s_add_u32 s{sT1}, s{sT1}, s{sW}
    s_lshl_b32 s{sT1}, s{sT1}, 3
    s_add_u32 s{sT0}, s{sT0}, s{sT1}
    v_mov_b32 v{vFST}, s{sT0}
    v_cmp_eq_u32 vcc, 0, v{vTID}
    v_bfrev_b32 v{vT3}, -2
    s_nop 0
    v_cndmask_b32 v{vFST}, v{vT3}, v{vFST}, vcc""")


def areg(t, h, rb):
    return 16 * t + 8 * h + 4 * rb


def x_read(e, cfg, t, k):
    h, rb = k >> 1, k & 1
    a = areg(t, h, rb)
    return e.lds(f"ds_read_b128 a[{a}:{a+3}], v{vXR+h} offset:{(t % cfg.NX)*4096 + rb*2048}")


def ring_read(e, buf, frag_pos):
    off = frag_pos * 1024
    base = vRD0 if off < 65536 else vRD1
    r = vACC - 4 - 4 * buf
    return e.lds(f"ds_read_b128 v[{r}:{r+3}], v{base} offset:{off & 0xffff}")


def acc(j, rb):
    return vACC + 8 * j + 4 * rb


def mfma(e, j, rb, t, h, buf, first):
    c = acc(j, rb)
    a = areg(t, h, rb)
    r = vACC - 4 - 4 * buf
    src = "0" if first else f"v[{c}:{c+3}]"
    e(f"v_mfma_f32_16x16x32_bf16 v[{c}:{c+3}], a[{a}:{a+3}], v[{r}:{r+3}], {src}")
    e.accw[(j, rb)] = e.n


def am_issue(e, g, tags):
    if g == 0:
        tags["am0"] = e.vmem(f"buffer_load_dwordx2 v[{vSC}:{vSC+1}], v{vSC+4}, s[{sAM}:{sAM+3}], s{sAMO} offen")
    elif g == 1:
        tags["am1"] = e.vmem(f"buffer_load_dword v{vSC+5}, v{vSC+5}, s[{sAM}:{sAM+3}], s{sAMO} offen offset:256")
    else:
        tags["am2"] = e.vmem(f"buffer_load_ushort v{vSC+6}, v{vSC+6}, s[{sAM}:{sAM+3}], s{sAMO} offen offset:384")


def q_issue(e, cfg, g, tags):
    fl = cfg.q_flags
    for i in range(8):
        so = "0"
        if i:
            e(f"s_mov_b32 s{sT0}, {i*QROW}")
            so = f"s{sT0}"
        if g == 0:
            r = vQAd + 4 * i
            tags[(0, i)] = e.vmem(f"buffer_load_dwordx4 v[{r}:{r+3}], v{vQA}, s[{sQ}:{sQ+3}], {so} offen {fl}")
        elif g == 1:
            r = vQBd + 2 * i
            tags[(1, i)] = e.vmem(f"buffer_load_dwordx2 v[{r}:{r+1}], v{vQB1}, s[{sQ}:{sQ+3}], {so} offen offset:512 {fl}")
        else:
            r = vQBd + 16 + i
            tags[(2, i)] = e.vmem(f"buffer_load_dword v{r}, v{vQB2}, s[{sQ}:{sQ+3}], {so} offen offset:768 {fl}")


def dequant(e, cfg, g, tags, lut, fbase):
    nb = GNU[g]
    qreg = lambda i8, i: (vQAd + 4 * i8 + i) if g == 0 else (vQBd + 2 * i8 + i) if g == 1 else (vQBd + 16 + i8)
    if g == 0:
        e.wait(vm=tags["am0"])
        e(f"""v_and_b32 v{vSC+3}, 0xffff0000, v{vSC+1}
        v_lshlrev_b32 v{vSC+2}, 16, v{vSC+1}
        v_and_b32 v{vSC+1}, 0xffff0000, v{vSC}
        v_lshlrev_b32 v{vSC}, 16, v{vSC}""")
        sc = vSC
    elif g == 1:
        e.wait(vm=tags["am1"])
        e(f"v_lshlrev_b32 v{vSC+4}, 16, v{vSC+5}\nv_and_b32 v{vSC+5}, 0xffff0000, v{vSC+5}")
        sc = vSC + 4
    else:
        e.wait(vm=tags["am2"])
        e(f"v_lshlrev_b32 v{vSC+6}, 16, v{vSC+6}")
        sc = vSC + 6
    pend = []

    def finish(d, rtags):
        e.wait(lg=max(rtags))
        for i in range(nb):
            f = fbase + 8 * i
            s = sc + i
            sp = s & ~1
            sel = "op_sel_hi:[1,0]" if s == sp else "op_sel:[0,1] op_sel_hi:[1,1]"
            e(f"v_pk_mul_f32 v[{f+2*d}:{f+2*d+1}], v[{f+2*d}:{f+2*d+1}], v[{sp}:{sp+1}] {sel}")
        for i in range(nb):
            f = fbase + 8 * i
            e(f"v_cvt_pk_bf16_f32 v{f+d}, v{f+2*d}, v{f+2*d+1}")

    depth = 1 if nb == 4 else 2 if nb == 2 else 4
    for d in range(4):
        rtags = []
        for i8 in (2 * d, 2 * d + 1):
            e.wait(vm=tags[(g, i8)])
            for i in range(nb):
                e(f"v_lshlrev_b32 v{qreg(i8,i)}, 2, v{qreg(i8,i)}")
            for i in range(nb):
                rtags.append(e.lds(f"ds_read_b32 v{fbase+8*i+i8}, v{qreg(i8,i)} offset:{lut}"))
        pend.append((d, rtags))
        if len(pend) > depth:
            finish(*pend.pop(0))
    while pend:
        finish(*pend.pop(0))


def w_soff(e, g, t):
    if g == 2:
        return f"s{sC12+t}"
    e(f"s_lshl_b32 s{sSO}, s{sC12+t}, {2-g}")
    return f"s{sSO}"


def pub_store(e, g, fbase, flags="sc1"):
    so = w_soff(e, g, 0)
    last = None
    for i in range(GNU[g]):
        f = fbase + 8 * i
        last = e.vmem(f"buffer_store_dwordx4 v[{f}:{f+3}], v{vWG+g}, s[{sWS}:{sWS+3}], {so} offen offset:{i*1024} {flags}")
    return last


def pub_lds(e, g, fbase, frag0):
    e(f"v_add_u32 v{vT3}, s{sWK+g}, v{vRD0}")
    last = None
    for i in range(GNU[g]):
        f = fbase + 8 * i
        last = e.lds(f"ds_write_b128 v{vT3}, v[{f}:{f+3}] offset:{(frag0+i)*1024}")
    return last


def poll_ins(part):
    return f"buffer_load_dwordx2 v[{vPOLL}:{vPOLL+1}], v{vFLG}, s[{sWS}:{sWS+3}], 0 offen offset:{part*512} sc1"


def poll_check(e, part, tag, uid):
    test = f"""v_cmp_eq_u64 vcc, s[{sNONCE}:{sNONCE+1}], v[{vPOLL}:{vPOLL+1}]
    s_or_b64 s[{sT2}:{sT2+1}], vcc, s[{sRDY}:{sRDY+1}]
    s_cmp_eq_u64 s[{sT2}:{sT2+1}], -1"""
    e.wait(vm=tag)
    e(test)
    e(f"s_cbranch_scc1 L_ok_{uid}")
    e(f"s_mov_b32 s{sSPIN}, {SPIN_MAX}")
    e.label(f"L_poll_{uid}")
    e(f"s_sub_u32 s{sSPIN}, s{sSPIN}, 1\ns_cbranch_scc1 L_ok_{uid}")
    e(poll_ins(part))
    e("s_waitcnt vmcnt(0)")
    e(test)
    e(f"s_cbranch_scc0 L_poll_{uid}")
    e.label(f"L_ok_{uid}")


def flag_store(e, part):
    e.vmem(f"buffer_store_dwordx2 v[{vT1}:{vT2}], v{vFST}, s[{sWS}:{sWS+3}], 0 offen offset:{part*512} sc1")


def epi_atoms(e, cfg, g):
    out = []
    j0 = GJ0[g]
    tiles = [(j, rb) for j in range(j0, j0 + GNS[g]) for rb in range(2)]
    k = 0
    for rb in range(2):
        for r in range(4):
            row = 16 * rb + r
            for sub in range(1 if g == 2 else 2):
                tmp = vEP + 2 * (k % 8)
                k += 1
                A = []

                def cvt(d, j):
                    def f():
                        e.acc_ready(tiles)
                        e(f"v_cvt_pk_bf16_f32 v{d}, v{acc(j, rb_)+r_}, v{acc(j+1, rb_)+r_}")
                    rb_, r_ = rb, r
                    A.append((1, f))
                if g == 0:
                    cvt(tmp, 4 * sub)
                    cvt(tmp + 1, 4 * sub + 2)
                else:
                    cvt(tmp, j0 + 2 * sub)
                so = "0"
                if row:
                    if sub == 0:
                        A.append((1, lambda row=row: e(f"s_mov_b32 s{sROW}, {row*OROW}")))
                    so = f"s{sROW}"
                if g == 0:
                    ins = f"buffer_store_dwordx2 v[{tmp}:{tmp+1}], v{vOUT}, s[{sO}:{sO+3}], {so} offen offset:{128*sub} {cfg.out_flags}"
                else:
                    ins = f"buffer_store_dword v{tmp}, v{vOUT+1}, s[{sO}:{sO+3}], {so} offen offset:{(256 if g == 1 else 384) + 64*sub} {cfg.out_flags}"
                A.append((cfg.vcost, lambda ins=ins: e.vmem(ins)))
                out.append(A)
    return out


def make_items(cfg):
    if cfg.items:
        return cfg.items
    items = []
    n1 = 1
    for t in range(1, 16):
        items.append((t, 0))
        if t >= cfg.inter_from and n1 <= cfg.inter:
            items.append((n1, 1))
            n1 += 1
    items += [(t, 1) for t in range(n1, 16)]
    items += [(t, 2) for t in range(1, 16)]
    return items


def stream(e, cfg, items, u0, pre):
    NU, D, NB = cfg.NU, cfg.D, cfg.NB
    fr = []
    it_first = []
    it_pos = []
    pos = u0
    for i, (t, g) in enumerate(items):
        if pos + GNU[g] > NU:
            pos = 0
        it_pos.append(pos)
        it_first.append(len(fr))
        for h in range(2):
            for j in range(GNS[g]):
                fr.append((i, t, h, GJ0[g] + j, pos * 4 + h * GNS[g] + j))
        pos += GNU[g]
    nf = len(fr)
    it_first.append(nf)
    st_first = [0]
    sizes = list(cfg.first_stages)
    want = sizes.pop(0) if sizes else cfg.stage
    for i in range(1, len(items)):
        if it_first[i] - it_first[st_first[-1]] >= want:
            st_first.append(i)
            want = sizes.pop(0) if sizes else cfg.stage
    nst = len(st_first)
    st_first.append(len(items))
    stage_of = [max(s for s in range(nst) if st_first[s] <= i) for i in range(len(items))]
    bar_pos = [max(0, it_first[st_first[s]] - D + 1) if it_first[st_first[s]] >= D else 0 for s in range(nst)]
    occ = {u: -1 for u in range(u0)}
    early = []
    for i, (t, g) in enumerate(items):
        need = None
        for u in range(it_pos[i], it_pos[i] + GNU[g]):
            if u in occ:
                need = occ[u] if need is None else max(need, occ[u])
            occ[u] = it_first[i + 1] - 1
        if need is None:
            early.append(-1)
        else:
            early.append(min(s for s in range(nst) if bar_pos[s] > need or (need < 0)))
        assert early[-1] < stage_of[i], ("ring too small", i)
    dma_tag = {}
    nbar = [0]
    tasks = []
    gate = pre.get("gate", {})

    def w_atoms(i):
        t, g = items[i]
        so = [None]

        def a0():
            assert early[i] < nbar[0], ("ring slot busy", i)
            assert e.lut_free or not (it_pos[i] <= 15 < it_pos[i] + GNU[g]), "look-up table still in use"
            if i in gate:
                gate.pop(i)()
            e(f"s_add_u32 m0, s{sWK+g}, {it_pos[i]*4096}")

        def a1():
            so[0] = w_soff(e, g, t)
            if g == 2:
                e("s_nop 0")
        A = [(1, a0), (1, a1)]
        for q in range(GNU[g]):
            def f(q=q):
                dma_tag[i] = e.vmem(f"buffer_load_dwordx4 v{vWG+g}, s[{sWS}:{sWS+3}], {so[0]} offen offset:{q*1024} {cfg.w_flags} lds")
            A.append((cfg.vcost, f))
        return A

    xtag = pre["xtag"]
    xread = pre["xread"]
    first_use = {}
    for f, (i, t, h, j, p) in enumerate(fr):
        first_use.setdefault(t, f)

    def xr_atoms(t):
        A = [(1, lambda: e.wait(vm=xtag[t]))]
        for k in range(4):
            def f(k=k):
                xread[(t, k)] = x_read(e, cfg, t, k)
            A.append((1, f))
        return A

    def run(A):
        for c, f in A:
            f()

    nxt = 0
    for tok in cfg.init.split():
        if tok == "W":
            run(w_atoms(nxt))
            nxt += 1
        elif tok == "x":
            t = max(xtag) + 1
            occ_t = t - cfg.NX
            if occ_t >= 0:
                e.wait(lg=max(xread[(occ_t, k)] for k in range(4)))
            run(xd_atoms(e, cfg, t, xtag, xread))
        elif tok[0] == "r":
            run(xr_atoms(int(tok[1:])))
        else:
            pre["tok"][tok]()
    order = sorted(first_use, key=first_use.get)
    xtodo = [t for t in order if t not in xtag]
    xunread = [t for t in order if (t, 0) not in xread]
    p0 = 0
    for i in range(nxt, len(items)):
        s = early[i]
        p = max(p0, bar_pos[s] - 1 if s >= 0 else 0, bar_pos[stage_of[i]] - cfg.w_fly)
        if i in gate:
            p = max(p, cfg.pollb_at + cfg.pollb_wait)
        tasks.append([p, bar_pos[stage_of[i]] - cfg.land, w_atoms(i), "w"])
        p0 = p + cfg.dma_gap
    xr_pos = {}
    prev = -100
    for t in xunread:
        p = max(0, first_use[t] - cfg.x_lead, prev + 4)
        p = min(p, max(0, first_use[t] - D - 6))
        xr_pos[t] = p
        prev = p
        tasks.append([p, first_use[t] - D - 16 - cfg.land, xr_atoms(t), "xr"])
    for t in xtodo:
        o = t - cfg.NX
        p = 0
        if o in xr_pos:
            p = xr_pos[o] + D + 6
        p = max(p, xr_pos[t] - cfg.x_fly)
        assert p < xr_pos[t], (t, p, xr_pos[t])
        tasks.append([p, xr_pos[t] - cfg.land - 10, xd_atoms(e, cfg, t, xtag, xread), "xd"])
    last_of = {}
    for f, (i, t, h, j, p) in enumerate(fr):
        last_of[items[i][1]] = f
    p = 0
    for g in sorted(last_of, key=last_of.get):
        p = max(p, last_of[g] + 3)
        for A in epi_atoms(e, cfg, g):
            tasks.append([p, p + cfg.epi_slack, A, "epi"])
            p += cfg.epi_gap
    for m, A in pre.get("extra", []):
        tasks.append([m, m - 100, A, "extra"])

    rtag = {}
    bar_at = {it_first[st_first[s]]: s for s in range(nst)}

    def issue_read(f):
        cost = 1
        if f in bar_at:
            s = bar_at[f]
            e.wait(vm=dma_tag[st_first[s + 1] - 1])
            e("s_barrier")
            nbar[0] += 1
            cost = 3
            if s == 0:
                stamp(e, cfg, 7)
        rtag[f] = ring_read(e, f % NB, fr[f][4])
        return cost

    cur = []

    def fill(f, budget):
        nonlocal cur
        while budget > 0:
            if not cur:
                ready = [tk for tk in tasks if tk[0] <= f]
                if not ready:
                    return
                tk = min(ready, key=lambda k: (k[1], k[0]))
                tasks.remove(tk)
                cur = list(tk[2])
            if cur[0][0] > budget:
                return
            c, fn = cur.pop(0)
            fn()
            budget -= c

    def operands(f):
        i, t, h, j, p = fr[f]
        return max(rtag[f], xread[(t, 2 * h)], xread[(t, 2 * h + 1)])

    for f in range(min(D, nf)):
        issue_read(f)
    e.wait(lg=operands(0))
    for f, (i, t, h, j, p) in enumerate(fr):
        assert operands(f) <= e.lg_done
        mfma(e, j, 0, t, h, f % NB, False)
        if f in cfg.stamp_m:
            stamp(e, cfg, cfg.stamp_m[f], True)
        fill(f - 1, cfg.budget)
        mfma(e, j, 1, t, h, f % NB, False)
        b = cfg.budget
        if f + D < nf:
            b -= issue_read(f + D)
        willwait = f + 1 < nf and operands(f + 1) > e.lg_done
        fill(f, b - (1 if willwait else 0))
        if f + 1 < nf and operands(f + 1) > e.lg_done:
            need = operands(f + 1)
            for k in range(2, cfg.waitevery + 1):
                if f + k < nf and f + k in rtag and (fr[f + k][1], 2 * fr[f + k][2] + 1) in xread:
                    need = max(need, operands(f + k))
            e.wait(lg=need)
    assert not gate
    stamp(e, cfg, 9)
    run(cur)
    for tk in sorted(tasks, key=lambda k: k[0]):
        assert tk[3] == "epi", tk
        run(tk[2])


def xd_atoms(e, cfg, t, xtag, xread):
    slot = t % cfg.NX
    o = t - cfg.NX

    def a0():
        if o >= 0:
            for k in range(4):
                assert xread[(o, k)] <= e.lg_done, ("x slot busy", t)
        e(f"s_add_u32 m0, s{sXST}, {slot*4096}")
    A = [(1, a0), (1, lambda: e(f"s_lshr_b32 s{sSO}, s{sC12+t}, 5"))]
    for i in range(4):
        def f(i=i):
            xtag[t] = e.vmem(f"buffer_load_dwordx4 v{vXG+i}, s[{sX}:{sX+3}], s{sSO} offen offset:{i*1024} lds")
        A.append((cfg.vcost, f))
    return A


def own_mfmas(e, cfg, xread, groups, f):
    seq = []
    for g in groups:
        for h in range(2):
            for j in range(GNS[g]):
                seq.append((GJ0[g] + j, h, f))
                f += 1
    NB, D = 6, 5
    tag = {}
    for i in range(D):
        tag[i] = ring_read(e, i % NB, seq[i][2])
    for i, (j, h, fp) in enumerate(seq):
        e.wait(lg=max(tag[i], xread[(0, 2 * h)], xread[(0, 2 * h + 1)]))
        mfma(e, j, 0, 0, h, i % NB, h == 0)
        mfma(e, j, 1, 0, h, i % NB, h == 0)
        if i + D < len(seq):
            tag[i + D] = ring_read(e, (i + D) % NB, seq[i + D][2])


def write_stamps(e, cfg):
    if cfg.padto:
        e.label("L_pad")
        e(f"s_memrealtime s[4:5]\ns_waitcnt lgkmcnt(0)\ns_sub_u32 s4, s4, s18\ns_cmp_lt_u32 s4, {cfg.padto}\ns_cbranch_scc1 L_pad")
    if not cfg.stamps:
        return
    e("s_waitcnt vmcnt(0)")
    stamp(e, cfg, 10)
    e("s_memrealtime s[4:5]")
    e("s_waitcnt lgkmcnt(0)")
    e(f"s_lshl_b32 s{sT0}, s2, 2\ns_add_u32 s{sT0}, s{sT0}, s{sW}\ns_lshl_b32 s{sT0}, s{sT0}, 6\ns_add_u32 s{sT0}, s{sT0}, {STAMP_OFF}")
    e(f"v_mov_b32 v{vT0}, s{sT0}")
    e("s_mov_b64 exec, 1")
    for i in range(11):
        e(f"s_sub_u32 s{sT1}, s{sSTAMP+2*i}, s{sSTAMP}\nv_mov_b32 v{vT1}, s{sT1}")
        e(f"buffer_store_dword v{vT1}, v{vT0}, s[{sWS}:{sWS+3}], 0 offen offset:{4*i}")
        e("s_nop 0")
    e(f"s_sub_u32 s{sT1}, s4, s18\nv_mov_b32 v{vT1}, s{sT1}")
    e(f"buffer_store_dword v{vT1}, v{vT0}, s[{sWS}:{sWS+3}], 0 offen offset:44")
    e(f"s_nop 0\nv_mov_b32 v{vT1}, s18")
    e(f"buffer_store_dword v{vT1}, v{vT0}, s[{sWS}:{sWS+3}], 0 offen offset:48")
    e(f"s_nop 0\nv_mov_b32 v{vT1}, s4")
    e(f"buffer_store_dword v{vT1}, v{vT0}, s[{sWS}:{sWS+3}], 0 offen offset:52")
    e(f"s_lshl_b32 s{sT0}, s2, 2\ns_add_u32 s{sT0}, s{sT0}, s{sW}\ns_cmp_lg_u32 s{sT0}, {cfg.dbg_wave}\ns_cbranch_scc1 L_end")
    for i in range(1, 11):
        e(f"s_sub_u32 s{sT1}, s{sSTAMP+2*i}, s{sSTAMP}\nv_mov_b32 v{vT1}, s{sT1}")
        e(f"buffer_store_dword v{vT1}, off, s[{sDBG}:{sDBG+3}], 0 offset:{4*i+4}")
        e("s_nop 0")


def gen_kernel(cfg, kname):
    e = Em()
    e.raw(f".text\n.globl {kname}\n.p2align 12\n.p2align 8\n.type {kname},@function\n{kname}:")
    prologue(e, cfg, kname)
    addr_q(e, cfg)
    LUT = 60 * 1024
    e("s_waitcnt lgkmcnt(0)")
    tags = {}
    tags["cb"] = e.vmem(f"buffer_load_ushort v{vT0}, v{vT3}, s[{sCB}:{sCB+3}], 0 offen")
    am_issue(e, 0, tags)
    q_issue(e, cfg, 0, tags)
    if cfg.stamps:
        for i in range(1, 11):
            e(f"s_mov_b64 s[{sSTAMP+2*i}:{sSTAMP+2*i+1}], s[{sSTAMP}:{sSTAMP+1}]")
    stamp(e, cfg, 1)
    e(f"s_or_b32 s{sT0}, s2, s{sW}\ns_cmp_lg_u32 s{sT0}, 0\ns_cbranch_scc1 L_notag")
    e(f"""s_or_b32 s{sNONCE}, s{sNONCE}, 1
    v_mov_b32 v{vACC}, s{sNONCE}
    v_mov_b32 v{vACC+1}, s{sNONCE+1}
    s_mov_b64 exec, 1
    buffer_store_dwordx2 v[{vACC}:{vACC+1}], off, s[{sDBG}:{sDBG+3}], 0 sc1
    s_mov_b64 exec, -1""")
    e.label("L_notag")
    if cfg.order_barrier:
        e("s_barrier")
    if cfg.xtouch:
        e(f"""s_lshl_b32 s{sT0}, s2, 2
        s_add_u32 s{sT0}, s{sT0}, s{sW}
        s_lshl_b32 s{sT0}, s{sT0}, 12
        v_lshlrev_b32 v{vACC+5}, 6, v{vTID}""")
        e.vmem(f"buffer_load_dword v{vACC+5}, v{vACC+5}, s[{sX}:{sX+3}], s{sT0} offen")
    am_issue(e, 1, tags)
    am_issue(e, 2, tags)
    if "q" not in cfg.mid:
        q_issue(e, cfg, 1, tags)
        q_issue(e, cfg, 2, tags)
    addr_w(e, cfg)
    addr_flags(e, cfg)
    if cfg.touch:
        so = w_soff(e, 0, 0)
        e("s_mov_b64 exec, 1")
        e.vmem(f"buffer_load_dword v{vACC+2}, v{vWG}, s[{sWS}:{sWS+3}], {so} offen sc1")
        e.vmem(f"buffer_load_dword v{vACC+3}, v{vFST}, s[{sWS}:{sWS+3}], 0 offen sc1")
        e("s_mov_b64 exec, -1")
    if cfg.pref_code:
        e(f"""s_getpc_b64 s[{sPC}:{sPC+1}]
        L_pc:
        s_lshr_b32 s{sT0}, s2, 3
        s_lshl_b32 s{sT0}, s{sT0}, 2
        s_add_u32 s{sT0}, s{sT0}, s{sW}
        s_lshl_b32 s{sT0}, s{sT0}, 8
        v_lshl_add_u32 v{vACC+4}, v{vTID}, 7, s{sT0}
        v_min_u32 v{vACC+4}, L_end-L_pc, v{vACC+4}
        s_mov_b64 exec, 3""")
        e.vmem(f"global_load_dword v{vACC+4}, v{vACC+4}, s[{sPC}:{sPC+1}]")
        e("s_mov_b64 exec, -1")
    tags["nonce"] = e.vmem(f"buffer_load_dwordx2 v[{vNV}:{vNV+1}], off, s[{sDBG}:{sDBG+3}], 0 sc1")
    addr_x(e, cfg)
    addr_out(e, cfg)
    if cfg.tour:
        e("s_mov_b64 exec, 0")
        for w in range(4):
            e(f"s_cmp_eq_u32 s{sW}, {w}\ns_cbranch_scc1 L_pad{w+2}")
        e.label("L_back")
        e("s_mov_b64 exec, -1\ns_branch L_pad1")
        e.raw(".p2align 12")
        e.label("L_pad1")
    e.wait(vm=tags["cb"])
    e(f"v_lshlrev_b32 v{vT0}, 16, v{vT0}\nv_lshlrev_b32 v{vT3}, 2, v{vTID}")
    e.wait(lg=e.lds(f"ds_write_b32 v{vT3}, v{vT0} offset:{LUT}"))
    dequant(e, cfg, 0, tags, LUT, vF)
    stamp(e, cfg, 2)
    stA = pub_store(e, 0, vF, cfg.st_flags)
    xtag, xread = {}, {}

    def xd(t):
        for c, f in xd_atoms(e, cfg, t, xtag, xread):
            f()

    def loads():
        for tok in cfg.mid.split():
            if tok == "q":
                q_issue(e, cfg, 1, tags)
                q_issue(e, cfg, 2, tags)
            else:
                xd(len(xtag))
    if not cfg.hold:
        loads()
    lw = pub_lds(e, 0, vF, 0)
    e.wait(vm=tags["nonce"])
    e(f"v_readfirstlane_b32 s{sNONCE}, v{vNV}\nv_readfirstlane_b32 s{sNONCE+1}, v{vNV+1}")
    e(f"s_cmp_lg_u32 s{sNONCE}, 0\ns_cbranch_scc1 L_tagok")
    e(f"s_mov_b32 s{sSPIN}, {SPIN_MAX}")
    e.label("L_tagpoll")
    e(f"s_sub_u32 s{sSPIN}, s{sSPIN}, 1\ns_cbranch_scc1 L_tagok")
    e(f"buffer_load_dwordx2 v[{vNV}:{vNV+1}], off, s[{sDBG}:{sDBG+3}], 0 sc1\ns_waitcnt vmcnt(0)")
    e(f"v_readfirstlane_b32 s{sNONCE}, v{vNV}\nv_readfirstlane_b32 s{sNONCE+1}, v{vNV+1}")
    e(f"s_cmp_lg_u32 s{sNONCE}, 0\ns_cbranch_scc0 L_tagpoll")
    e.label("L_tagok")
    e(f"s_nop 0\nv_mov_b32 v{vT1}, s{sNONCE}\nv_mov_b32 v{vT2}, s{sNONCE+1}")
    e.wait(vm=stA)
    flag_store(e, 0)
    stamp(e, cfg, 3)
    if cfg.hold:
        loads()
    e.wait(vm=xtag[0], lg=lw)
    e("s_barrier")
    for k in range(4):
        xread[(0, k)] = x_read(e, cfg, 0, k)
    own_mfmas(e, cfg, xread, [0], 0)
    stamp(e, cfg, 4)

    def ownB():
        dequant(e, cfg, 1, tags, LUT, vQAd)
        dequant(e, cfg, 2, tags, LUT, vQAd + 16)
        pub_lds(e, 1, vQAd, 16)
        lw = pub_lds(e, 2, vQAd + 16, 24)
        e.wait(lg=lw)
        e("s_barrier")
        e.lut_free = True
        own_mfmas(e, cfg, xread, [1, 2], 16)
        stamp(e, cfg, 6)
    ptag = {}
    stB = {}

    def gateA():
        ptag[0] = e.vmem(poll_ins(0))
        poll_check(e, 0, ptag[0], "a")
        stamp(e, cfg, 5)

    def storeB():
        pub_store(e, 1, vQAd, cfg.st_flags)
        stB[0] = pub_store(e, 2, vQAd + 16, cfg.st_flags)

    items = make_items(cfg)
    ib = min(i for i, (t, g) in enumerate(items) if g >= 1)
    gate = {0: gateA, ib: lambda: poll_check(e, 1, ptag[1], "b")}

    def pb():
        ptag[1] = e.vmem(poll_ins(1))
    extra = [(cfg.flagb_at, [(1, lambda: e.wait(vm=stB[0])), (2, lambda: flag_store(e, 1))]),
             (cfg.pollb_at, [(cfg.vcost, pb)])]
    pre = dict(xtag=xtag, xread=xread, gate=gate, extra=extra, tok={"B": storeB, "O": ownB})
    stream(e, cfg, items, 7, pre)
    write_stamps(e, cfg)
    e.label("L_end")
    e("s_endpgm")
    e.raw(f""".section .rodata,"a"
.p2align 6
.amdhsa_kernel {kname}
  .amdhsa_next_free_vgpr 512
  .amdhsa_next_free_sgpr 102
  .amdhsa_accum_offset 256
  .amdhsa_group_segment_fixed_size 0
  .amdhsa_kernarg_size 56
  .amdhsa_user_sgpr_count 2
  .amdhsa_user_sgpr_kernarg_segment_ptr 1
  .amdhsa_system_sgpr_workgroup_id_x 1
  .amdhsa_float_denorm_mode_32 3
.end_amdhsa_kernel""")
    return "\n".join(e.L)


HEADER = """; NF4 codebook dequantisation + bf16 GEMM (generated by a hand-written generator script)
; @launch grid=(256,1,1) block=(256,1,1) lds=163840
.amdgcn_target "amdgcn-amd-amdhsa--gfx950"
"""


def place_pads(text):
    import subprocess, tempfile, os, re
    lines = text.split("\n")
    i1 = lines.index("L_pad1:")
    probe = list(lines)
    iend = probe.index("L_end:")
    probe[iend:iend] = [f"L_pad{k}:" for k in range(2, 6)]
    with tempfile.TemporaryDirectory() as d:
        open(d + "/a.s", "w").write("\n".join(probe))
        subprocess.run(["clang", "-x", "assembler", "-target", "amdgcn-amd-amdhsa", "-mcpu=gfx950",
                        "-c", d + "/a.s", "-o", d + "/a.o"], check=True)
        dis = subprocess.run(["llvm-objdump", "-d", "--mcpu=gfx950", d + "/a.o"],
                             capture_output=True, text=True, check=True).stdout.split("\n")
    j = [n for n, l in enumerate(dis) if l.endswith("<L_pad1>:")][0]
    sizes = [4 * len(l.split("//")[1].split(":")[1].split()) for l in dis[j:] if "//" in l]
    out = lines[:i1 + 1]
    addr = 0
    k = 2
    n = 0
    for l in lines[i1 + 1:]:
        is_ins = l.startswith("    ") and not l.strip().endswith(":") and n < len(sizes)
        if is_ins or l == "L_end:":
            if k <= 5 and (addr >= 4096 * (k - 1) or l == "L_end:"):
                while k <= 5 and (addr >= 4096 * (k - 1) or l == "L_end:"):
                    out.append(f"L_pad{k}:")
                    k += 1
                out.append("    s_cbranch_execz L_back")
                out.append("    s_nop 0")
                addr += 8
        if is_ins:
            addr += sizes[n]
            n += 1
        out.append(l)
    assert addr <= 5 * 4096, addr
    return "\n".join(out)


def build(**kw):
    c = Cfg()
    c.w_fly = 1000
    c.flagb_at = 4
    for k, v in kw.items():
        assert hasattr(c, k), k
        setattr(c, k, v)
    text = HEADER + gen_kernel(c, NAME + "_kernel") + "\n"
    if c.tour:
        text = place_pads(text)
    return text


if __name__ == "__main__":
    out = sys.argv[1]
    kw = {}
    for a in sys.argv[2:]:
        k, v = a.split("=", 1)
        try:
            v = eval(v)
        except Exception:
            pass
        kw[k] = v
    open(out, "w").write(build(**kw))
```

```python
from asmlib import *
def prologue(k):
    k("""
    s_load_dwordx4 s[4:7], s[0:1], 0
    s_load_dwordx2 s[20:21], s[0:1], 16
    s_and_b32 s22, s2, 7          ; xcd
    s_lshr_b32 s23, s2, 3         ; j
    s_and_b32 s24, s22, 1
    s_lshl_b32 s24, s24, 2
    s_and_b32 s25, s23, 3
    s_add_u32 s24, s24, s25       ; mt
    s_lshr_b32 s25, s22, 1
    s_lshl_b32 s25, s25, 3
    s_lshr_b32 s26, s23, 2
    s_add_u32 s25, s25, s26       ; nt
    s_waitcnt lgkmcnt(0)
    s_mov_b32 s8, s4
    s_mov_b32 s9, s5
    s_mov_b32 s10, 4194304
    s_mov_b32 s11, 0x20000
    s_mov_b32 s12, s6
    s_mov_b32 s13, s7
    s_mov_b32 s14, 14680064
    s_mov_b32 s15, 0x20000
    s_mov_b32 s16, s20
    s_mov_b32 s17, s21
    s_mov_b32 s18, 65536
    s_mov_b32 s19, 0x20000
    v_and_b32 v1, 63, v0          ; lane
    v_lshrrev_b32 v2, 6, v0       ; wave
    v_and_b32 v2, 3, v2
    s_nop 1
    v_readfirstlane_b32 s27, v2   ; wave&3
    """)
def epilogue(k, ncol=1):
    k(f"""
    s_waitcnt vmcnt(0)
    s_barrier
    s_memtime s[42:43]
    s_waitcnt lgkmcnt(0)
    s_sub_u32 s42, s42, s40
    v_mov_b32 v3, s42
    s_lshl_b32 s44, s2, 2
    v_mov_b32 v4, s44
    v_cmp_eq_u32 vcc, 0, v0
    s_and_saveexec_b64 s[46:47], vcc
    s_cbranch_execz L_end_{k.name}
    buffer_store_dword v3, v4, s[16:19], 0 offen
L_end_{k.name}:
    """)
def addrA_coal(k, v):
    k(f"""
    v_lshrrev_b32 v{v}, 3, v1
    v_lshlrev_b32 v{v}, 11, v{v}
    v_and_b32 v5, 7, v1
    v_lshl_add_u32 v{v}, v5, 4, v{v}
    s_lshl_b32 s28, s24, 19
    s_lshl_b32 s29, s27, 17
    s_add_u32 s28, s28, s29
    v_add_u32 v{v}, s28, v{v}
    """)
def addrA_mfma(k, v):
    k(f"""
    v_and_b32 v{v}, 15, v1
    v_lshlrev_b32 v{v}, 11, v{v}
    v_lshrrev_b32 v5, 4, v1
    v_lshl_add_u32 v{v}, v5, 4, v{v}
    s_lshl_b32 s28, s24, 19
    s_lshl_b32 s29, s27, 17
    s_add_u32 s28, s28, s29
    v_add_u32 v{v}, s28, v{v}
    """)
def addrQ(k, v):
    k(f"""
    v_lshrrev_b32 v5, 5, v1
    v_mul_u32_u24 v{v}, 114688, v5     ; 8*14336
    v_and_b32 v5, 31, v1
    v_lshl_add_u32 v{v}, v5, 4, v{v}
    s_mul_i32 s28, s25, 448
    s_mul_i32 s29, s27, 229376         ; 16*14336
    s_add_u32 s28, s28, s29
    v_add_u32 v{v}, s28, v{v}
    v_cmp_gt_u32 vcc, 28, v5
    v_mov_b32 v6, 0x7fffffff
    s_nop 1
    v_cndmask_b32 v{v}, v6, v{v}, vcc
    """)

def make(name, doA, doQ, ksteps, reps, inflight, mask_q=False):
    k=K(name,3,vgpr=256)
    prologue(k)
    if doA in("coal","dma"): addrA_coal(k,10)
    if doA=="mfma": addrA_mfma(k,10)
    if doQ: addrQ(k,11)
    if doA in("coal","dma"):
        for i in range(8): k(f"v_add_u32 v{12+i}, {i*8*2048}, v10")
    if doA=="mfma":
        for i in range(4): k(f"v_add_u32 v{12+i}, {i*16*2048}, v10")
    if doQ:
        for i in range(8): k(f"v_add_u32 v{20+i}, {i*14336}, v11")
    if doA=="dma":
        k("s_lshl_b32 s50, s27, 13")
    k(f"s_mov_b32 s30, {reps}")
    k("s_barrier\ns_memtime s[40:41]\ns_waitcnt lgkmcnt(0)")
    k(f"L_rep_{name}:")
    k("s_mov_b32 s31, 0\ns_mov_b32 s32, 0\ns_mov_b32 s33, 0")
    k(f"L_k_{name}:")
    r=32
    def nxt():
        nonlocal r
        x=r; r+=4
        if r>=252: r=32
        return x
    n=0
    for i in range(8):
        if doA=="coal":
            x=nxt(); k(f"buffer_load_dwordx4 v[{x}:{x+3}], v{12+i}, s[8:11], s31 offen"); n+=1
        if doA=="dma":
            k(f"s_add_u32 m0, s50, {i*1024}")
            k("s_nop 0")
            k(f"buffer_load_dwordx4 v{12+i}, s[8:11], s31 offen lds"); n+=1
        if doA=="mfma":
            x=nxt(); k(f"buffer_load_dwordx4 v[{x}:{x+3}], v{12+i//2}, s[8:11], s31 offen offset:{(i%2)*64}"); n+=1
        if doQ:
            x=nxt(); k(f"buffer_load_dwordx4 v[{x}:{x+3}], v{20+i}, s[12:15], s32 offen"); n+=1
        k(f"s_waitcnt vmcnt({inflight})")
    k(f"""s_add_u32 s31, s31, 128
    s_add_u32 s32, s32, {64*14336}
    s_add_u32 s33, s33, 1
    s_cmp_lt_u32 s33, {ksteps}
    s_cbranch_scc1 L_k_{name}
    s_sub_u32 s30, s30, 1
    s_cmp_lg_u32 s30, 0
    s_cbranch_scc1 L_rep_{name}
    """)
    epilogue(k)
    return k
if __name__=="__main__":
    ks=[]
    for inf in (8,24,48):
        ks.append(make(f"a_coal_{inf}","coal",False,8,20,inf))
        ks.append(make(f"a_mfma_{inf}","mfma",False,8,20,inf))
        ks.append(make(f"a_dma_{inf}","dma",False,8,20,inf))
        ks.append(make(f"q_{inf}",None,True,8,20,inf))
        ks.append(make(f"aq_dma_{inf}","dma",True,8,20,inf))
        ks.append(make(f"aq_dma_cold_{inf}","dma",True,16,1,inf))
    build("mb1",ks)
    open("mb1.sh","w").write("\n".join(
      f"./run mb1.co {k.name} 256 256 65536 10 {1 if 'cold' in k.name else 0} 1 3 4194304 14680064 65536" for k in ks)+"\n")
```

```python
from asmlib import *
from mb1 import prologue
NC=4
def make(name, mode, every=4, iters=200):
    k=K(name,3,vgpr=256)
    prologue(k)
    k("v_lshlrev_b32 v11, 4, v1\ns_lshl_b32 s50, s27, 13\ns_add_u32 s50, s50, 65536\ns_mov_b32 m0, s50")
    k("s_lshl_b32 s51, s27, 12\ns_lshl_b32 s52, s24, 19\ns_add_u32 s51, s51, s52\nv_add_u32 v10, s51, v11")
    k("s_add_u32 s56, s4, s51\ns_addc_u32 s57, s5, 0\ns_and_b32 s57, s57, 0xffff\ns_or_b32 s57, s57, 0x100000\ns_mov_b32 s58, 0x40000\ns_mov_b32 s59, 0x800000")
    for i in range(16,40): k(f"v_mov_b32 v{i}, 0")
    k(f"s_mov_b32 s30, {iters}\ns_mov_b32 s31, 0")
    k("s_barrier\ns_memtime s[40:41]\ns_waitcnt lgkmcnt(0)")
    k(f"L_{name}:")
    for f in range(28):
        a=128+8*(f%14)
        k(f"v_mfma_f32_16x16x32_bf16 v[{a}:{a+3}], v[16:19], v[20:23], v[{a}:{a+3}]")
        if mode!="none" and f%every==0:
            o=((f//every)%4)*1024
            if mode=="offen": k(f"buffer_load_dwordx4 v10, s[8:11], s31 offen offset:{o} lds")
            else: k(f"buffer_load_dwordx4 off, s[56:59], s31 offset:{o} lds")
        k(f"v_mfma_f32_16x16x32_bf16 v[{a+4}:{a+7}], v[16:19], v[20:23], v[{a+4}:{a+7}]")
        k(f"ds_read_b128 v[{72+4*(f%8)}:{75+4*(f%8)}], v11 offset:{f*1024}")
        if f%2: k("s_waitcnt lgkmcnt(4)")
    k("s_waitcnt vmcnt(20)")
    k(f"s_add_u32 s31, s31, 16384\ns_and_b32 s31, s31, 0x3ffff\ns_sub_u32 s30, s30, 1\ns_cmp_lg_u32 s30, 0\ns_cbranch_scc1 L_{name}")
    k("s_waitcnt vmcnt(0) lgkmcnt(0)\ns_barrier\ns_memtime s[42:43]\ns_waitcnt lgkmcnt(0)")
    k("s_mov_b32 s31, 0")
    if mode=="tid": k("buffer_load_dwordx4 off, s[56:59], s31 offset:1024 lds")
    else: k("buffer_load_dwordx4 v10, s[8:11], s31 offen offset:1024 lds")
    k("buffer_load_dword v50, v10, s[8:11], s31 offen offset:1028\ns_waitcnt vmcnt(0)\nv_add_u32 v51, s50, v11\nds_read_b32 v52, v51 offset:1028\ns_waitcnt lgkmcnt(0)\nv_cmp_ne_u32 vcc, v50, v52\ns_bcnt1_i32_b64 s60, vcc")
    k(f"s_sub_u32 s42, s42, s40\ns_mul_i32 s44, s2, {NC*4}\nv_mov_b32 v4, s44\nv_mov_b32 v2, s42\nv_mov_b32 v3, s60")
    k(f"v_cmp_eq_u32 vcc, 0, v0\ns_and_saveexec_b64 s[46:47], vcc\ns_cbranch_execz L_end_{name}")
    k("buffer_store_dwordx2 v[2:3], v4, s[16:19], 0 offen")
    k(f"L_end_{name}:")
    return k
ks=[];L=[]
for n,m,e in (("none","none",4),("offen4","offen",4),("tid4","tid",4),("offen2","offen",2),("tid2","tid",2),("offen3","offen",3),("tid3","tid",3)):
    ks.append(make(n,m,e))
    L.append(f"./run mb14.co {n} 256 256 131072 3 0 {NC} 3 4194304 14680064 65536 | awk '{{printf \"%s \", ($1 ~ /col0/)? $5/200 : ($1 ~ /col1/)? \"mismatch \"$7 : ($1 ~ /col/)? \"\" : $1}} END {{print \"\"}}'")
build("mb14",ks)
open("mb14.sh","w").write("\n".join(L)+"\n")
```
